```python
import torch

def _softmax(x, axis=-1):
    return torch.softmax(x, dim=axis)
def _gelu(x):
    return torch.nn.functional.gelu(x, approximate="tanh")
def _silu(x):
    return torch.nn.functional.silu(x)
def _sigmoid(x):
    return torch.sigmoid(x)
def _layernorm(x, axis=-1, eps=1e-5):
    m = x.mean(dim=axis, keepdim=True)
    v = x.var(dim=axis, keepdim=True, unbiased=False)
    return (x - m) / torch.sqrt(v + eps)
def _scatter_add(tgt, idx, src, axis=0):
    return tgt.clone().index_add_(axis, idx, src)
def _segment_sum(src, seg, n):
    out = torch.zeros((n,) + src.shape[1:], dtype=src.dtype)
    return out.index_add_(0, seg, src)
def _pad(x, pw):
    flat = tuple(v for pair in reversed(pw) for v in pair)
    return torch.nn.functional.pad(x, flat)

kernel_name = 'concat_heads__mha_block_cached__gqa_block_cached__near_ridge'

def setup_inputs():

    _w = (lambda a: (lambda t: t.to(torch.bfloat16) if t.is_floating_point() else t)(torch.as_tensor(a)))
    def _A_setup():
        B, Sq, D = 8, 192, 512
        H, Sk, Dh = 32, 1024, 128
        return {
            "x": _w((lambda *s: torch.randn(*s, dtype=torch.bfloat16) * 0.8)(B, Sq, D)),
            "k_cache": _w((lambda *s: torch.randn(*s, dtype=torch.bfloat16) * 0.8)(B, H, Sk, Dh)),
            "v_cache": _w((lambda *s: torch.randn(*s, dtype=torch.bfloat16) * 0.05)(B, H, Sk, Dh)),
            "wq": _w((lambda *s: torch.randn(*s, dtype=torch.bfloat16) * 0.8)(D, H * Dh) * (D ** -0.5)),
            "wo": _w((lambda *s: torch.randn(*s, dtype=torch.bfloat16) * 0.05)(H * Dh, D) * ((H * Dh) ** -0.5)),
        }
    _A_in = _A_setup()

    def _B_setup():
        B, Sq, D = 8, 192, 512
        Hq, Hkv, Sk, Dh = 32, 32, 1024, 128
        assert Hq % Hkv == 0, (Hq, Hkv)
        return {
            "x": _w((lambda *s: torch.randn(*s, dtype=torch.bfloat16) * 0.8)(B, Sq, D)),
            "k_cache": _w((lambda *s: torch.randn(*s, dtype=torch.bfloat16) * 0.8)(B, Hkv, Sk, Dh)),
            "v_cache": _w((lambda *s: torch.randn(*s, dtype=torch.bfloat16) * 0.05)(B, Hkv, Sk, Dh)),
            "wq": _w((lambda *s: torch.randn(*s, dtype=torch.bfloat16) * 0.8)(D, Hq * Dh) * (D ** -0.5)),
            "wo": _w((lambda *s: torch.randn(*s, dtype=torch.bfloat16) * 0.05)(Hq * Dh, D) * ((Hq * Dh) ** -0.5)),
        }
    _B_in = _B_setup()

    return {
        "A_x": _A_in["x"],
        "A_k_cache": _A_in["k_cache"],
        "A_v_cache": _A_in["v_cache"],
        "A_wq": _A_in["wq"],
        "A_wo": _A_in["wo"],
        "B_x": _B_in["x"],
        "B_k_cache": _B_in["k_cache"],
        "B_v_cache": _B_in["v_cache"],
        "B_wq": _B_in["wq"],
        "B_wo": _B_in["wo"],
    }

def reference(A_x, A_k_cache, A_v_cache, A_wq, A_wo, B_x, B_k_cache, B_v_cache, B_wq, B_wo):
    def _A_ref(x, k_cache, v_cache, wq, wo):
        B, Sq, D = x.shape
        H, Dh = 32, 128
        q = (lambda x, *d: x.permute(*d))((x @ wq).reshape(B, Sq, H, Dh), 0, 2, 1, 3)
        scores = torch.einsum("bhqd,bhkd->bhqk", q, k_cache) * (Dh ** -0.5)
        p = _softmax(scores, axis=-1)
        o = torch.einsum("bhqk,bhkd->bhqd", p, v_cache)
        return (lambda x, *d: x.permute(*d))(o, 0, 2, 1, 3).reshape(B, Sq, H * Dh) @ wo

    def _B_ref(x, k_cache, v_cache, wq, wo):
        B, Sq, D = x.shape
        Hq, Dh = 32, 128
        Hkv = k_cache.shape[1]
        rep = Hq // Hkv
        q = (lambda x, *d: x.permute(*d))((x @ wq).reshape(B, Sq, Hq, Dh), 0, 2, 1, 3)
        k = (lambda x, n, axis: torch.repeat_interleave(x, n, dim=axis))(k_cache, rep, axis=1)
        v = (lambda x, n, axis: torch.repeat_interleave(x, n, dim=axis))(v_cache, rep, axis=1)
        scores = torch.einsum("bhqd,bhkd->bhqk", q, k) * (Dh ** -0.5)
        p = _softmax(scores, axis=-1)
        o = torch.einsum("bhqk,bhkd->bhqd", p, v)
        return (lambda x, *d: x.permute(*d))(o, 0, 2, 1, 3).reshape(B, Sq, Hq * Dh) @ wo

    a = _A_ref(A_x, A_k_cache, A_v_cache, A_wq, A_wo)
    b = _B_ref(B_x, B_k_cache, B_v_cache, B_wq, B_wo)
    return torch.concatenate([a, b], axis=-1)
```

```python
import math, struct

KNAME = "concat_heads__mha_block_cached__gqa_block_cached__near_ridge"

def f32hex(x):
    return "0x%08x" % struct.unpack("<I", struct.pack("<f", x))[0]

class Asm:
    def __init__(self):
        self.lines = []
    def __call__(self, s):
        self.lines.append("    " + s)
    def label(self, s):
        self.lines.append(s + ":")
    def comment(self, s):
        self.lines.append("    ; " + s)
    def text(self):
        return "\n".join(self.lines) + "\n"

def vr(base, n=1):
    return "v%d" % base if n == 1 else "v[%d:%d]" % (base, base + n - 1)
def sr(base, n=1):
    return "s%d" % base if n == 1 else "s[%d:%d]" % (base, base + n - 1)

QF = 4
OA = 52
SS = 148
FR = 196
KA = 228
VA = 232
V_DK = 240; V_DV = 241; V_DW = 242
MC = 243
LL = 246
TM = 249
V_XO = 1; V_OO = 2; V_T3 = 3

def qf(j, ks): return QF + (j * 4 + ks) * 4
def oa(j, dt): return OA + (j * 8 + dt) * 4
def ss(kt, j): return SS + (kt * 3 + j) * 4

S_X = 8; S_WQ = 12; S_K = 16; S_V = 20; S_O = 24
S_W = 28
S_C = 29
S_T = 30
S_SOFF = 31
S_KOFF = 32
S_VOFF = 33
S_LOOP = 34
S_XO0 = 35; S_XO1 = 36; S_XO2 = 37
S_M0B = 38
S_TMP = 39
S_WOFF = 40

NSLOT = 4
SLOT = 16384

DEBUG = None
def gen_attention(a):
    c = (128 ** -0.5) * math.log2(math.e)
    a.label(KNAME + "_kernel")
    a("s_cmp_ge_u32 s2, 512")
    a("s_cbranch_scc1 L_attn_done")
    a("s_lshr_b32 s3, s2, 8")
    a("s_and_b32 s4, s2, 255")
    a("s_lshr_b32 s5, s4, 5")
    a("s_and_b32 s6, s4, 31")
    a("s_mul_i32 s7, s3, 40")
    a("s_add_u32 s42, s0, s7")
    a("s_addc_u32 s43, s1, 0")
    a("s_load_dwordx2 s[44:45], s[42:43], 0")
    a("s_load_dwordx2 s[46:47], s[42:43], 8")
    a("s_load_dwordx2 s[48:49], s[42:43], 16")
    a("s_load_dwordx2 s[50:51], s[42:43], 24")
    a("s_load_dwordx2 s[52:53], s[0:1], 96")
    a("v_lshrrev_b32 v3, 6, v0")
    a("v_and_b32 v0, 63, v0")
    a("s_nop 0")
    a("v_readfirstlane_b32 s%d, v3" % S_W)
    a("v_and_b32 v%d, 15, v0" % (TM + 0))
    a("v_lshrrev_b32 v%d, 4, v0" % (TM + 1))
    L16 = TM + 0; G = TM + 1; T2 = TM + 2; T3 = TM + 3; T4 = TM + 4; T5 = TM + 5
    a("s_waitcnt lgkmcnt(0)")
    a("s_mul_i32 s7, s5, 196608")
    a("s_add_u32 s%d, s44, s7" % S_X)
    a("s_addc_u32 s%d, s45, 0" % (S_X + 1))
    a("s_and_b32 s%d, s%d, 0xffff" % (S_X + 1, S_X + 1))
    a("s_mov_b32 s%d, 196608" % (S_X + 2))
    a("s_mov_b32 s%d, 0x00020000" % (S_X + 3))
    a("s_lshl_b32 s7, s6, 8")
    a("s_add_u32 s%d, s50, s7" % S_WQ)
    a("s_addc_u32 s%d, s51, 0" % (S_WQ + 1))
    a("s_and_b32 s%d, s%d, 0xffff" % (S_WQ + 1, S_WQ + 1))
    a("s_sub_u32 s%d, 4194304, s7" % (S_WQ + 2))
    a("s_mov_b32 s%d, 0x00020000" % (S_WQ + 3))
    a("s_lshl_b32 s7, s4, 18")
    for (sd, sp) in ((S_K, 46), (S_V, 48)):
        a("s_add_u32 s%d, s%d, s7" % (sd, sp))
        a("s_addc_u32 s%d, s%d, 0" % (sd + 1, sp + 1))
        a("s_and_b32 s%d, s%d, 0xffff" % (sd + 1, sd + 1))
        a("s_mov_b32 s%d, 262144" % (sd + 2))
        a("s_mov_b32 s%d, 0x00020000" % (sd + 3))
    a("s_mul_i32 s7, s3, 12582912")
    a("s_mul_i32 s41, s5, 1572864")
    a("s_add_u32 s7, s7, s41")
    a("s_lshl_b32 s41, s6, 8")
    a("s_add_u32 s7, s7, s41")
    a("s_add_u32 s%d, s52, s7" % S_O)
    a("s_addc_u32 s%d, s53, 0" % (S_O + 1))
    a("s_and_b32 s%d, s%d, 0xffff" % (S_O + 1, S_O + 1))
    a("s_sub_u32 s%d, 1572864, s41" % (S_O + 2))
    a("s_mov_b32 s%d, 0x00020000" % (S_O + 3))
    a("s_mov_b32 s%d, %s" % (S_C, f32hex(c)))
    a("s_mov_b32 s%d, %s" % (S_T, f32hex(8.0)))
    a("s_lshl_b32 s%d, s%d, 10" % (S_M0B, S_W))
    a("v_lshlrev_b32 v%d, 8, v%d" % (T2, L16))
    for ks in range(4):
        a("v_add_u32 v%d, %d, v%d" % (T3, 4 * ks, G))
        a("v_xor_b32 v%d, v%d, v%d" % (T3, T3, L16))
        a("v_lshlrev_b32 v%d, 4, v%d" % (T3, T3))
        a("v_add_u32 v%d, v%d, v%d" % (KA + ks, T2, T3))
    a("v_lshrrev_b32 v%d, 2, v%d" % (T2, L16))
    a("v_lshlrev_b32 v%d, 2, v%d" % (T3, G))
    a("v_add_u32 v%d, v%d, v%d" % (T3, T3, T2))
    a("v_lshlrev_b32 v%d, 8, v%d" % (T3, T3))
    a("v_and_b32 v%d, 1, v%d" % (T4, L16))
    a("v_lshlrev_b32 v%d, 3, v%d" % (T4, T4))
    a("v_add_u32 v%d, v%d, v%d" % (T3, T3, T4))
    a("v_and_b32 v%d, 1, v%d" % (T4, G))
    a("v_lshlrev_b32 v%d, 3, v%d" % (T4, T4))
    a("v_lshlrev_b32 v%d, 1, v%d" % (T2, T2))
    a("v_add_u32 v%d, v%d, v%d" % (T4, T4, T2))
    a("v_bfe_u32 v%d, v%d, 1, 1" % (T2, L16))
    a("v_xor_b32 v%d, v%d, v%d" % (T4, T4, T2))
    a("v_lshlrev_b32 v%d, 4, v%d" % (T4, T4))
    a("v_add_u32 v%d, v%d, v%d" % (VA, T3, T4))
    for dt in range(1, 8):
        a("v_xor_b32 v%d, %d, v%d" % (VA + dt, 32 * dt, VA))
    a("s_lshl_b32 s7, s%d, 2" % S_W)
    a("v_add_u32 v%d, s7, v%d" % (T2, G))
    a("v_xor_b32 v%d, v%d, v%d" % (T3, T2, L16))
    a("v_lshlrev_b32 v%d, 4, v%d" % (T3, T3))
    a("v_lshlrev_b32 v%d, 8, v%d" % (T4, T2))
    a("v_add_u32 v%d, v%d, v%d" % (V_DK, T4, T3))
    a("v_and_b32 v%d, 7, v%d" % (T3, T2))
    a("v_lshlrev_b32 v%d, 1, v%d" % (T3, T3))
    a("v_xor_b32 v%d, v%d, v%d" % (T3, T3, L16))
    a("v_lshlrev_b32 v%d, 4, v%d" % (T3, T3))
    a("v_add_u32 v%d, v%d, v%d" % (V_DV, T4, T3))
    a("v_lshlrev_b32 v%d, 13, v%d" % (T4, T2))
    a("v_add_u32 v%d, v%d, v%d" % (V_DW, T4, T3))
    if DEBUG == "nocomp_lin":
        a("v_lshlrev_b32 v%d, 4, v%d" % (T3, L16))
        a("v_lshlrev_b32 v%d, 8, v%d" % (T4, T2))
        a("v_add_u32 v%d, v%d, v%d" % (V_DK, T4, T3))
        a("v_add_u32 v%d, v%d, v%d" % (V_DV, T4, T3))
    a("s_mul_i32 s7, s%d, 48" % S_W)
    a("v_add_u32 v%d, s7, v%d" % (T2, L16))
    a("v_lshlrev_b32 v%d, 10, v%d" % (T3, T2))
    a("v_lshlrev_b32 v%d, 3, v%d" % (T4, G))
    a("v_add_u32 v%d, v%d, v%d" % (V_XO, T3, T4))
    a("v_lshlrev_b32 v%d, 13, v%d" % (T3, T2))
    a("v_lshlrev_b32 v%d, 3, v%d" % (T4, G))
    a("v_add_u32 v%d, v%d, v%d" % (V_OO, T3, T4))
    a("v_lshrrev_b32 v%d, 1, v%d" % (T2, G))
    a("v_xor_b32 v%d, v%d, v%d" % (T2, T2, L16))
    a("v_lshlrev_b32 v%d, 4, v%d" % (T2, T2))
    a("v_lshlrev_b32 v%d, 8, v%d" % (T3, L16))
    a("v_add_u32 v%d, v%d, v%d" % (T2, T2, T3))
    a("v_and_b32 v%d, 1, v%d" % (T3, G))
    a("v_lshlrev_b32 v%d, 3, v%d" % (T3, T3))
    a("v_add_u32 v%d, v%d, v%d" % (V_T3, T2, T3))
    for i in range(96):
        a("v_mov_b32 v%d, 0" % (OA + i))
    for j in range(3):
        a("v_mov_b32 v%d, 0xff800000" % (MC + j))
        a("v_mov_b32 v%d, 0" % (LL + j))
    a("s_mov_b32 s%d, 0" % S_KOFF)
    a("s_mov_b32 s%d, 0" % S_VOFF)
    a("s_mov_b32 s%d, 0" % S_WOFF)
    a("s_mov_b32 s%d, 0" % S_XO0)
    a("s_mov_b32 s%d, 16384" % S_XO1)
    a("s_mov_b32 s%d, 32768" % S_XO2)

    def dma_item(kind, slot):
        srd = {'W': S_WQ, 'K': S_K, 'V': S_V}[kind]
        voff = {'W': V_DW, 'K': V_DK, 'V': V_DV}[kind]
        soffbase = {'W': S_WOFF, 'K': S_KOFF, 'V': S_VOFF}[kind]
        rowstride = 8192 if kind == 'W' else 256
        for jj in range(4):
            a("s_add_u32 m0, s%d, %d" % (S_M0B, slot * SLOT + 4096 * jj))
            a("s_add_u32 s%d, s%d, %d" % (S_SOFF, soffbase, 16 * jj * rowstride))
            a("buffer_load_dwordx4 v%d, %s, s%d offen lds" % (voff, sr(srd, 4), S_SOFF))
        a("s_add_u32 s%d, s%d, %d" % (soffbase, soffbase, 64 * rowstride))

    def x_load(buf):
        for j in range(3):
            for i in range(2):
                r = SS + buf * 24 + (j * 2 + i) * 4
                a("buffer_load_dwordx2 %s, v%d, %s, s%d offen offset:%d" % (vr(r, 2), V_XO, sr(S_X, 4), S_XO0 + j, 64 * i))
                a("buffer_load_dwordx2 %s, v%d, %s, s%d offen offset:%d" % (vr(r + 2, 2), V_XO, sr(S_X, 4), S_XO0 + j, 64 * i + 32))
        for j in range(3):
            a("s_add_u32 s%d, s%d, 128" % (S_XO0 + j, S_XO0 + j))

    def pv_like(slot, bfrag, acc_zero=False):
        if DEBUG and DEBUG.startswith("nocomp"): return
        frags = [(dt, i) for dt in range(8) for i in range(2)]
        NB = 8
        PRE = 4
        def issue(n):
            dt, i = frags[n]
            r = FR + (n % NB) * 4
            off = slot * SLOT + i * 8192
            a("ds_read_b64_tr_b16 %s, v%d offset:%d" % (vr(r, 2), VA + dt, off))
            a("ds_read_b64_tr_b16 %s, v%d offset:%d" % (vr(r + 2, 2), VA + dt, off + 4096))
        for n in range(min(PRE, len(frags))):
            issue(n)
        for n in range(len(frags)):
            if n + PRE < len(frags):
                issue(n + PRE)
                outstanding_after = PRE
            else:
                outstanding_after = len(frags) - 1 - n
            a("s_waitcnt lgkmcnt(%d)" % (2 * outstanding_after))
            dt, i = frags[n]
            r = FR + (n % NB) * 4
            for j in range(3):
                a("v_mfma_f32_16x16x32_bf16 %s, %s, %s, %s" % (vr(oa(j, dt), 4), vr(r, 4), vr(bfrag(j, i), 4), vr(oa(j, dt), 4)))

    dma_item('W', 0); dma_item('W', 1); dma_item('W', 2)
    x_load(0)
    for p in range(8):
        a("s_waitcnt vmcnt(%d)" % (4 if p >= 1 else 0))
        a("s_barrier")
        if p < 7:
            x_load((p + 1) % 2)
        nxt = p + 3
        if nxt <= 7: dma_item('W', nxt % NSLOT)
        elif nxt == 8: dma_item('K', 0)
        elif nxt == 9: dma_item('V', 1)
        elif nxt == 10: dma_item('K', 2)
        buf = p % 2
        pv_like(p % NSLOT, lambda j, i: SS + buf * 24 + (j * 2 + i) * 4)
    if DEBUG == "qacc":
        a("s_waitcnt vmcnt(0)")
        a("s_barrier")
        for j in range(3):
            a("s_mov_b32 s%d, %d" % (S_TMP, 131072 * j))
            for dt in range(8):
                o = oa(j, dt)
                a("v_cvt_pk_bf16_f32 v%d, v%d, v%d" % (o, o, o + 1))
                a("v_cvt_pk_bf16_f32 v%d, v%d, v%d" % (o + 1, o + 2, o + 3))
                a("buffer_store_dwordx2 %s, v%d, %s, s%d offen offset:%d" % (vr(o, 2), V_OO, sr(S_O, 4), S_TMP, 32 * dt))
        a("s_branch L_attn_done")
    a("s_waitcnt vmcnt(8)")
    a("s_barrier")
    qbase = 3 * SLOT
    a("s_lshl_b32 s%d, s%d, 12" % (S_TMP, S_W))
    a("v_add_u32 v%d, s%d, v%d" % (TM + 6, S_TMP, V_T3))
    for ks in range(4):
        a("v_add_u32 v%d, s%d, v%d" % (TM + 2 + ks, S_TMP, KA + ks))
    for j in range(3):
        for dt in range(8):
            r = FR + (dt % 8) * 2
            a("v_cvt_pk_bf16_f32 v%d, v%d, v%d" % (r, oa(j, dt), oa(j, dt) + 1))
            a("v_cvt_pk_bf16_f32 v%d, v%d, v%d" % (r + 1, oa(j, dt) + 2, oa(j, dt) + 3))
            a("v_xor_b32 v%d, %d, v%d" % (TM + 0, 32 * dt, TM + 6))
            a("ds_write_b64 v%d, %s offset:%d" % (TM + 0, vr(r, 2), qbase))
        a("s_waitcnt lgkmcnt(0)")
        for ks in range(4):
            a("ds_read_b128 %s, v%d offset:%d" % (vr(qf(j, ks), 4), TM + 2 + ks, qbase))
        a("s_waitcnt lgkmcnt(0)")
    for i in range(96):
        a("v_mov_b32 v%d, 0" % (OA + i))

    def s_phase(slot):
        if DEBUG and DEBUG.startswith("nocomp"): return
        def issue(kt):
            for ks in range(4):
                r = FR + (kt % 2) * 16 + ks * 4
                a("ds_read_b128 %s, v%d offset:%d" % (vr(r, 4), KA + ks, slot * SLOT + kt * 4096))
        issue(0)
        for kt in range(4):
            if kt + 1 < 4:
                issue(kt + 1)
                a("s_waitcnt lgkmcnt(4)")
            else:
                a("s_waitcnt lgkmcnt(0)")
            for ks in range(4):
                r = FR + (kt % 2) * 16 + ks * 4
                for j in range(3):
                    cc = "0" if ks == 0 else vr(ss(kt, j), 4)
                    a("v_mfma_f32_16x16x32_bf16 %s, %s, %s, %s" % (vr(ss(kt, j), 4), vr(r, 4), vr(qf(j, ks), 4), cc))

    def softmax(uid):
        if DEBUG and DEBUG.startswith("nocomp"): return
        T = [TM + 0, TM + 1, TM + 2]
        U = [TM + 3, TM + 4, TM + 5]
        a("s_nop 7")
        vals = {j: [ss(kt, j) + r for kt in range(4) for r in range(4)] for j in range(3)}
        for j in range(3):
            v = vals[j]
            a("v_max3_f32 v%d, v%d, v%d, v%d" % (T[j], v[0], v[1], v[2]))
        for step in range(6):
            for j in range(3):
                v = vals[j]
                a("v_max3_f32 v%d, v%d, v%d, v%d" % (T[j], T[j], v[3 + 2 * step], v[4 + 2 * step]))
        for j in range(3):
            a("v_max_f32 v%d, v%d, v%d" % (T[j], T[j], vals[j][15]))
        for j in range(3):
            a("v_mov_b32 v%d, v%d" % (U[j], T[j]))
        a("s_nop 0")
        for j in range(3):
            a("v_permlane32_swap_b32 v%d, v%d" % (T[j], U[j]))
        for j in range(3):
            a("v_max_f32 v%d, v%d, v%d" % (T[j], T[j], U[j]))
        for j in range(3):
            a("v_mov_b32 v%d, v%d" % (U[j], T[j]))
        a("s_nop 0")
        for j in range(3):
            a("v_permlane16_swap_b32 v%d, v%d" % (T[j], U[j]))
        for j in range(3):
            a("v_max_f32 v%d, v%d, v%d" % (T[j], T[j], U[j]))
        for j in range(3):
            a("v_mul_f32 v%d, s%d, v%d" % (T[j], S_C, T[j]))
        for j in range(3):
            a("v_sub_f32 v%d, v%d, v%d" % (U[j], T[j], MC + j))
        a("v_max3_f32 v%d, v%d, v%d, v%d" % (TM + 6, U[0], U[1], U[2]))
        a("v_cmp_lt_f32 vcc, s%d, v%d" % (S_T, TM + 6))
        a("s_cbranch_vccz L_norescale_%s" % uid)
        for j in range(3):
            a("v_max_f32 v%d, v%d, v%d" % (T[j], T[j], MC + j))
        for j in range(3):
            a("v_sub_f32 v%d, v%d, v%d" % (U[j], MC + j, T[j]))
        for j in range(3):
            a("v_exp_f32 v%d, v%d" % (U[j], U[j]))
        for j in range(3):
            a("v_mov_b32 v%d, v%d" % (MC + j, T[j]))
        for j in range(3):
            a("v_mul_f32 v%d, v%d, v%d" % (LL + j, LL + j, U[j]))
        for j in range(3):
            for dt in range(8):
                for r in range(4):
                    a("v_mul_f32 v%d, v%d, v%d" % (oa(j, dt) + r, oa(j, dt) + r, U[j]))
        a.label("L_norescale_%s" % uid)
        for kt in range(4):
            for j in range(3):
                for r in range(4):
                    x = ss(kt, j) + r
                    a("v_fma_f32 v%d, v%d, s%d, -v%d" % (x, x, S_C, MC + j))
            for j in range(3):
                for r in range(4):
                    x = ss(kt, j) + r
                    a("v_exp_f32 v%d, v%d" % (x, x))
            for r in range(4):
                for j in range(3):
                    x = ss(kt, j) + r
                    a("v_add_f32 v%d, v%d, v%d" % (LL + j, LL + j, x))
        for i in range(2):
            for j in range(3):
                d = ss(2 * i, j); e = ss(2 * i + 1, j)
                a("v_cvt_pk_bf16_f32 v%d, v%d, v%d" % (d, d, d + 1))
                a("v_cvt_pk_bf16_f32 v%d, v%d, v%d" % (d + 1, d + 2, d + 3))
                a("v_cvt_pk_bf16_f32 v%d, v%d, v%d" % (d + 2, e, e + 1))
                a("v_cvt_pk_bf16_f32 v%d, v%d, v%d" % (d + 3, e + 2, e + 3))
        a("s_nop 1")

    def tile(t_par, uid, wk, wv, issue_v, issue_k):
        kslot = 0 if t_par == 0 else 2
        vslot = 1 if t_par == 0 else 3
        a("s_waitcnt vmcnt(%d)" % wk)
        a("s_barrier")
        if issue_v: dma_item('V', 3 if t_par == 0 else 1)
        s_phase(kslot)
        a("s_waitcnt vmcnt(%d)" % wv)
        a("s_barrier")
        if issue_k: dma_item('K', kslot)
        softmax(uid)
        pv_like(vslot, lambda j, i: ss(2 * i, j))

    a("s_mov_b32 s%d, 0" % S_LOOP)
    a.label("L_attn_loop")
    tile(0, "a", 8, 8, True, True)
    tile(1, "b", 8, 8, True, True)
    a("s_add_u32 s%d, s%d, 1" % (S_LOOP, S_LOOP))
    a("s_cmp_lt_u32 s%d, 7" % S_LOOP)
    a("s_cbranch_scc1 L_attn_loop")
    tile(0, "c", 8, 8, True, False)
    tile(1, "d", 4, 0, False, False)
    T = [TM + 0, TM + 1, TM + 2]
    for j in range(3):
        a("v_mov_b32 v%d, v%d" % (T[j], LL + j))
    a("s_nop 0")
    for j in range(3):
        a("v_permlane32_swap_b32 v%d, v%d" % (LL + j, T[j]))
    for j in range(3):
        a("v_add_f32 v%d, v%d, v%d" % (LL + j, LL + j, T[j]))
    for j in range(3):
        a("v_mov_b32 v%d, v%d" % (T[j], LL + j))
    a("s_nop 0")
    for j in range(3):
        a("v_permlane16_swap_b32 v%d, v%d" % (LL + j, T[j]))
    for j in range(3):
        a("v_add_f32 v%d, v%d, v%d" % (LL + j, LL + j, T[j]))
    for j in range(3):
        a("v_rcp_f32 v%d, v%d" % (LL + j, LL + j))
    a("s_nop 0")
    for j in range(3):
        a("s_mov_b32 s%d, %d" % (S_TMP, 131072 * j))
        for dt in range(8):
            o = oa(j, dt)
            for r in range(4):
                a("v_mul_f32 v%d, v%d, v%d" % (o + r, o + r, LL + j))
            a("v_cvt_pk_bf16_f32 v%d, v%d, v%d" % (o, o, o + 1))
            a("v_cvt_pk_bf16_f32 v%d, v%d, v%d" % (o + 1, o + 2, o + 3))
            a("buffer_store_dwordx2 %s, v%d, %s, s%d offen offset:%d" % (vr(o, 2), V_OO, sr(S_O, 4), S_TMP, 32 * dt))
    a.label("L_attn_done")
    a("s_endpgm")

def kd(name, vgpr=256, sgpr=64):
    return """.amdhsa_kernel %s
  .amdhsa_next_free_vgpr %d
  .amdhsa_next_free_sgpr %d
  .amdhsa_accum_offset %d
  .amdhsa_group_segment_fixed_size 0
  .amdhsa_kernarg_size 104
  .amdhsa_user_sgpr_count 2
  .amdhsa_user_sgpr_kernarg_segment_ptr 1
  .amdhsa_system_sgpr_workgroup_id_x 1
.end_amdhsa_kernel
""" % (name, vgpr, sgpr, (vgpr + 3) // 4 * 4)

if __name__ == "__main__":
    import sys
    if len(sys.argv) > 1: DEBUG = sys.argv[1]
    a = Asm()
    gen_attention(a)
    hdr = """; generated
; @launch grid=(512,1,1) block=(256,1,1) lds=65536
.amdgcn_target "amdgcn-amd-amdhsa--gfx950"
.text
.globl %s_kernel
.p2align 8
.type %s_kernel,@function
""" % (KNAME, KNAME)
    out = hdr + a.text() + '.section .rodata,"a"\n.p2align 6\n' + kd(KNAME + "_kernel")
    open("attn_only.s", "w").write(out)
    print("ok", len(a.lines))
```

```python
import sys
import gen_attn
from gen_attn import Asm, KNAME, kd, vr, sr, oa, OA, SS, FR, VA, TM, V_DW, V_XO, V_OO, S_W, S_M0B, S_SOFF, S_WOFF, S_XO0, S_WQ, S_X, S_O, S_TMP, SLOT, NSLOT

PART_BASE = 25165824
PART_STRIDE = 1536 * 1024 * 4

def gen_oproj(a):
    a.label("oproj_kernel")
    a("s_cmp_ge_u32 s2, 256")
    a("s_cbranch_scc1 L_op_done")
    a("s_and_b32 s3, s2, 3")
    a("s_lshr_b32 s4, s2, 2")
    a("s_and_b32 s4, s4, 3")
    a("s_lshr_b32 s5, s2, 4")
    a("s_and_b32 s5, s5, 7")
    a("s_lshr_b32 s6, s2, 7")
    a("s_mul_i32 s7, s6, 40")
    a("s_add_u32 s42, s0, s7")
    a("s_addc_u32 s43, s1, 0")
    a("s_load_dwordx2 s[50:51], s[42:43], 32")
    a("s_load_dwordx2 s[52:53], s[0:1], 96")
    a("v_lshrrev_b32 v3, 6, v0")
    a("v_and_b32 v0, 63, v0")
    a("s_nop 0")
    a("v_readfirstlane_b32 s%d, v3" % S_W)
    L16 = TM + 0; G = TM + 1; T2 = TM + 2; T3 = TM + 3; T4 = TM + 4
    a("v_and_b32 v%d, 15, v0" % L16)
    a("v_lshrrev_b32 v%d, 4, v0" % G)
    a("s_waitcnt lgkmcnt(0)")
    a("s_mul_i32 s7, s6, 12582912")
    a("s_mul_i32 s41, s5, 1572864")
    a("s_add_u32 s7, s7, s41")
    a("s_lshl_b32 s41, s3, 11")
    a("s_add_u32 s7, s7, s41")
    a("s_add_u32 s%d, s52, s7" % S_X)
    a("s_addc_u32 s%d, s53, 0" % (S_X + 1))
    a("s_and_b32 s%d, s%d, 0xffff" % (S_X + 1, S_X + 1))
    a("s_sub_u32 s%d, 1572864, s41" % (S_X + 2))
    a("s_mov_b32 s%d, 0x00020000" % (S_X + 3))
    a("s_lshl_b32 s7, s3, 20")
    a("s_lshl_b32 s41, s4, 8")
    a("s_add_u32 s7, s7, s41")
    a("s_add_u32 s%d, s50, s7" % S_WQ)
    a("s_addc_u32 s%d, s51, 0" % (S_WQ + 1))
    a("s_and_b32 s%d, s%d, 0xffff" % (S_WQ + 1, S_WQ + 1))
    a("s_sub_u32 s%d, 1048576, s41" % (S_WQ + 2))
    a("s_mov_b32 s%d, 0x00020000" % (S_WQ + 3))
    a("s_mul_i32 s7, s3, %d" % PART_STRIDE)
    a("s_add_u32 s7, s7, %d" % PART_BASE)
    a("s_mul_i32 s41, s5, 786432")
    a("s_add_u32 s7, s7, s41")
    a("s_lshl_b32 s41, s6, 11")
    a("s_lshl_b32 s44, s4, 9")
    a("s_add_u32 s41, s41, s44")
    a("s_add_u32 s7, s7, s41")
    a("s_add_u32 s%d, s52, s7" % S_O)
    a("s_addc_u32 s%d, s53, 0" % (S_O + 1))
    a("s_and_b32 s%d, s%d, 0xffff" % (S_O + 1, S_O + 1))
    a("s_sub_u32 s%d, 786432, s41" % (S_O + 2))
    a("s_mov_b32 s%d, 0x00020000" % (S_O + 3))
    a("s_lshl_b32 s%d, s%d, 10" % (S_M0B, S_W))
    a("v_lshrrev_b32 v%d, 2, v%d" % (T2, L16))
    a("v_lshlrev_b32 v%d, 2, v%d" % (T3, G))
    a("v_add_u32 v%d, v%d, v%d" % (T3, T3, T2))
    a("v_lshlrev_b32 v%d, 8, v%d" % (T3, T3))
    a("v_and_b32 v%d, 1, v%d" % (T4, L16))
    a("v_lshlrev_b32 v%d, 3, v%d" % (T4, T4))
    a("v_add_u32 v%d, v%d, v%d" % (T3, T3, T4))
    a("v_and_b32 v%d, 1, v%d" % (T4, G))
    a("v_lshlrev_b32 v%d, 3, v%d" % (T4, T4))
    a("v_lshlrev_b32 v%d, 1, v%d" % (T2, T2))
    a("v_add_u32 v%d, v%d, v%d" % (T4, T4, T2))
    a("v_bfe_u32 v%d, v%d, 1, 1" % (T2, L16))
    a("v_xor_b32 v%d, v%d, v%d" % (T4, T4, T2))
    a("v_lshlrev_b32 v%d, 4, v%d" % (T4, T4))
    a("v_add_u32 v%d, v%d, v%d" % (VA, T3, T4))
    for dt in range(1, 8):
        a("v_xor_b32 v%d, %d, v%d" % (VA + dt, 32 * dt, VA))
    a("s_lshl_b32 s7, s%d, 2" % S_W)
    a("v_add_u32 v%d, s7, v%d" % (T2, G))
    a("v_and_b32 v%d, 7, v%d" % (T3, T2))
    a("v_lshlrev_b32 v%d, 1, v%d" % (T3, T3))
    a("v_xor_b32 v%d, v%d, v%d" % (T3, T3, L16))
    a("v_lshlrev_b32 v%d, 4, v%d" % (T3, T3))
    a("v_lshlrev_b32 v%d, 10, v%d" % (T4, T2))
    a("v_add_u32 v%d, v%d, v%d" % (V_DW, T4, T3))
    a("s_mul_i32 s7, s%d, 48" % S_W)
    a("v_add_u32 v%d, s7, v%d" % (T2, L16))
    a("v_lshlrev_b32 v%d, 13, v%d" % (T3, T2))
    a("v_lshlrev_b32 v%d, 3, v%d" % (T4, G))
    a("v_add_u32 v%d, v%d, v%d" % (V_XO, T3, T4))
    a("v_lshlrev_b32 v%d, 12, v%d" % (T3, T2))
    a("v_lshlrev_b32 v%d, 4, v%d" % (T4, G))
    a("v_add_u32 v%d, v%d, v%d" % (V_OO, T3, T4))
    for i in range(96):
        a("v_mov_b32 v%d, 0" % (OA + i))
    a("s_mov_b32 s%d, 0" % S_WOFF)
    a("s_mov_b32 s%d, 0" % S_XO0)
    a("s_mov_b32 s%d, 131072" % (S_XO0 + 1))
    a("s_mov_b32 s%d, 262144" % (S_XO0 + 2))

    def dma_w(slot):
        for jj in range(4):
            a("s_add_u32 m0, s%d, %d" % (S_M0B, slot * SLOT + 4096 * jj))
            a("s_add_u32 s%d, s%d, %d" % (S_SOFF, S_WOFF, 16 * jj * 1024))
            a("buffer_load_dwordx4 v%d, %s, s%d offen lds" % (V_DW, sr(S_WQ, 4), S_SOFF))
        a("s_add_u32 s%d, s%d, %d" % (S_WOFF, S_WOFF, 64 * 1024))
    def x_load(buf):
        for j in range(3):
            for i in range(2):
                r = SS + buf * 24 + (j * 2 + i) * 4
                a("buffer_load_dwordx2 %s, v%d, %s, s%d offen offset:%d" % (vr(r, 2), V_XO, sr(S_X, 4), S_XO0 + j, 64 * i))
                a("buffer_load_dwordx2 %s, v%d, %s, s%d offen offset:%d" % (vr(r + 2, 2), V_XO, sr(S_X, 4), S_XO0 + j, 64 * i + 32))
        for j in range(3):
            a("s_add_u32 s%d, s%d, 128" % (S_XO0 + j, S_XO0 + j))
    def pv_like(slot, bfrag):
        frags = [(dt, i) for dt in range(8) for i in range(2)]
        NB = 8; PRE = 4
        def issue(n):
            dt, i = frags[n]
            r = FR + (n % NB) * 4
            off = slot * SLOT + i * 8192
            a("ds_read_b64_tr_b16 %s, v%d offset:%d" % (vr(r, 2), VA + dt, off))
            a("ds_read_b64_tr_b16 %s, v%d offset:%d" % (vr(r + 2, 2), VA + dt, off + 4096))
        for n in range(PRE):
            issue(n)
        for n in range(len(frags)):
            if n + PRE < len(frags):
                issue(n + PRE); oa_ = PRE
            else:
                oa_ = len(frags) - 1 - n
            a("s_waitcnt lgkmcnt(%d)" % (2 * oa_))
            dt, i = frags[n]
            r = FR + (n % NB) * 4
            for j in range(3):
                a("v_mfma_f32_16x16x32_bf16 %s, %s, %s, %s" % (vr(oa(j, dt), 4), vr(r, 4), vr(bfrag(j, i), 4), vr(oa(j, dt), 4)))
    NP = 16
    dma_w(0); dma_w(1); dma_w(2)
    x_load(0)
    for p in range(NP):
        a("s_waitcnt vmcnt(%d)" % (4 if (p >= 1 and p + 2 <= NP - 1) else 0))
        a("s_barrier")
        if p < NP - 1:
            x_load((p + 1) % 2)
        if p + 3 <= NP - 1:
            dma_w((p + 3) % NSLOT)
        buf = p % 2
        pv_like(p % NSLOT, lambda j, i: SS + buf * 24 + (j * 2 + i) * 4)
    for j in range(3):
        a("s_mov_b32 s%d, %d" % (S_TMP, 65536 * j))
        for dt in range(8):
            a("buffer_store_dwordx4 %s, v%d, %s, s%d offen offset:%d" % (vr(oa(j, dt), 4), V_OO, sr(S_O, 4), S_TMP, 64 * dt))
    a.label("L_op_done")
    a("s_endpgm")

def gen_reduce(a):
    a.label("reduce_kernel")
    a("s_cmp_ge_u32 s2, 768")
    a("s_cbranch_scc1 L_red_done")
    a("s_load_dwordx2 s[4:5], s[0:1], 96")
    a("s_load_dwordx2 s[6:7], s[0:1], 80")
    a("s_lshl_b32 s3, s2, 8")
    a("v_add_u32 v1, s3, v0")
    a("v_lshlrev_b32 v2, 5, v1")
    a("v_lshlrev_b32 v3, 4, v1")
    a("s_waitcnt lgkmcnt(0)")
    a("s_add_u32 s8, s4, %d" % PART_BASE)
    a("s_addc_u32 s9, s5, 0")
    a("s_and_b32 s9, s9, 0xffff")
    a("s_mov_b32 s10, %d" % (4 * PART_STRIDE))
    a("s_mov_b32 s11, 0x00020000")
    a("s_and_b32 s7, s7, 0xffff")
    a("s_mov_b32 s12, s6")
    a("s_mov_b32 s13, s7")
    a("s_mov_b32 s14, %d" % (1536 * 1024 * 2))
    a("s_mov_b32 s15, 0x00020000")
    for s in range(4):
        a("s_mov_b32 s16, %d" % (s * PART_STRIDE))
        a("buffer_load_dwordx4 %s, v2, s[8:11], s16 offen" % vr(8 + 8 * s, 4))
        a("buffer_load_dwordx4 %s, v2, s[8:11], s16 offen offset:16" % vr(12 + 8 * s, 4))
    a("s_waitcnt vmcnt(0)")
    for e in range(8):
        a("v_add_f32 v%d, v%d, v%d" % (8 + e, 8 + e, 16 + e))
        a("v_add_f32 v%d, v%d, v%d" % (24 + e, 24 + e, 32 + e))
    for e in range(8):
        a("v_add_f32 v%d, v%d, v%d" % (8 + e, 8 + e, 24 + e))
    for e in range(4):
        a("v_cvt_pk_bf16_f32 v%d, v%d, v%d" % (4 + e, 8 + 2 * e, 9 + 2 * e))
    a("buffer_store_dwordx4 v[4:7], v3, s[12:15], 0 offen")
    a.label("L_red_done")
    a("s_endpgm")

def emit(path):
    a1 = Asm(); gen_attn.gen_attention(a1)
    a2 = Asm(); gen_oproj(a2)
    a3 = Asm(); gen_reduce(a3)
    hdr = """; generated by gen/gen_all.py (my own generator)
; @launch kernel=%s_kernel grid=(512,1,1) block=(256,1,1) lds=65536
; @launch kernel=oproj_kernel grid=(256,1,1) block=(256,1,1) lds=65536
; @launch kernel=reduce_kernel grid=(768,1,1) block=(256,1,1) lds=0
.amdgcn_target "amdgcn-amd-amdhsa--gfx950"
.text
""" % KNAME
    def fn(name, asm):
        return ".globl %s\n.p2align 8\n.type %s,@function\n" % (name, name) + asm.text()
    out = hdr + fn(KNAME + "_kernel", a1) + fn("oproj_kernel", a2) + fn("reduce_kernel", a3)
    out += '.section .rodata,"a"\n.p2align 6\n' + kd(KNAME + "_kernel") + ".p2align 6\n" + kd("oproj_kernel") + ".p2align 6\n" + kd("reduce_kernel", 64)
    open(path, "w").write(out)

if __name__ == "__main__":
    emit(sys.argv[1] if len(sys.argv) > 1 else "cdna_kernels/%s.s" % KNAME)
    print("ok")
```
